```python
import torch

def _softmax(x, axis=-1):
    return torch.softmax(x, dim=axis)

def _gelu(x):
    return torch.nn.functional.gelu(x, approximate='tanh')

def _silu(x):
    return torch.nn.functional.silu(x)

def _sigmoid(x):
    return torch.sigmoid(x)

def _layernorm(x, axis=-1, eps=1e-05):
    m = x.mean(dim=axis, keepdim=True)
    v = x.var(dim=axis, keepdim=True, unbiased=False)
    return (x - m) / torch.sqrt(v + eps)

def _scatter_add(tgt, idx, src, axis=0):
    return tgt.clone().index_add_(axis, idx, src)

def _segment_sum(src, seg, n):
    out = torch.zeros((n,) + src.shape[1:], dtype=src.dtype)
    return out.index_add_(0, seg, src)

def _pad(x, pw):
    flat = tuple((v for pair in reversed(pw) for v in pair))
    return torch.nn.functional.pad(x, flat)
kernel_name = 'adaLN_cond__gqa_block_cached__dense_activation_relu__decode'

def setup_inputs():

    _w = lambda a: (lambda t: t.to(torch.bfloat16) if t.is_floating_point() else t)(torch.as_tensor(a))

    def _A_setup():
        B, Sq, D = (4, 1, 448)
        Hq, Hkv, Sk, Dh = (16, 8, 4096, 256)
        assert Hq % Hkv == 0, (Hq, Hkv)
        return {'x': _w((lambda *s: torch.randn(*s, dtype=torch.bfloat16) * 0.05)(B, Sq, D)), 'k_cache': _w((lambda *s: torch.randn(*s, dtype=torch.bfloat16) * 3.2)(B, Hkv, Sk, Dh)), 'v_cache': _w((lambda *s: torch.randn(*s, dtype=torch.bfloat16) * 0.4)(B, Hkv, Sk, Dh)), 'wq': _w((lambda *s: torch.randn(*s, dtype=torch.bfloat16) * 3.2)(D, Hq * Dh) * D ** (-0.5)), 'wo': _w((lambda *s: torch.randn(*s, dtype=torch.bfloat16) * 0.4)(Hq * Dh, D) * (Hq * Dh) ** (-0.5))}
    _A_in = _A_setup()

    def _B_setup():
        B, S, D, Dff = (4, 1, 448, 1792)
        return {'x': _w((lambda *s: torch.randn(*s, dtype=torch.bfloat16) * 0.05)(B, S, D)), 'w1': _w((lambda *s: torch.randn(*s, dtype=torch.bfloat16) * 0.05)(D, Dff)), 'w2': _w((lambda *s: torch.randn(*s, dtype=torch.bfloat16) * 0.05)(Dff, D))}
    _B_in = _B_setup()
    return {'A_x': _A_in['x'], 'A_k_cache': _A_in['k_cache'], 'A_v_cache': _A_in['v_cache'], 'A_wq': _A_in['wq'], 'A_wo': _A_in['wo'], 'B_x': _B_in['x'], 'B_w1': _B_in['w1'], 'B_w2': _B_in['w2'], 'c': _w((lambda *s: torch.randn(*s, dtype=torch.bfloat16) * 0.2)(4, 448) * 8.0), 'w_mod': _w((lambda *s: torch.randn(*s, dtype=torch.bfloat16) * 0.2)(448, 6 * 448) * 448 ** (-0.5) * 8.0)}

def reference(A_x, A_k_cache, A_v_cache, A_wq, A_wo, B_x, B_w1, B_w2, c, w_mod):

    def _A_ref(x, k_cache, v_cache, wq, wo):
        B, Sq, D = x.shape
        Hq, Dh = (16, 256)
        Hkv = k_cache.shape[1]
        rep = Hq // Hkv
        q = (lambda x, *d: x.permute(*d))((x @ wq).reshape(B, Sq, Hq, Dh), 0, 2, 1, 3)
        k = (lambda x, n, axis: torch.repeat_interleave(x, n, dim=axis))(k_cache, rep, axis=1)
        v = (lambda x, n, axis: torch.repeat_interleave(x, n, dim=axis))(v_cache, rep, axis=1)
        scores = torch.einsum('bhqd,bhkd->bhqk', q, k) * Dh ** (-0.5)
        p = _softmax(scores, axis=-1)
        o = torch.einsum('bhqk,bhkd->bhqd', p, v)
        return (lambda x, *d: x.permute(*d))(o, 0, 2, 1, 3).reshape(B, Sq, Hq * Dh) @ wo

    def _B_ref(x, w1, w2):
        h = torch.einsum('bsd,df->bsf', x, w1)
        zero = torch.zeros_like(h)
        h = torch.maximum(h, zero)
        return torch.einsum('bsf,fd->bsd', h, w2)
    x = A_x
    mod = (_silu(c) @ w_mod).reshape(c.shape[0], 6, 1, -1)
    sa, ca, ga, sb, cb, gb = (mod[:, 0].clone(), mod[:, 1].clone(), mod[:, 2].clone(), mod[:, 3].clone(), mod[:, 4].clone(), mod[:, 5].clone())
    h = _layernorm(x, axis=-1) * (1 + ca) + sa
    x = x + ga * _A_ref(h, A_k_cache, A_v_cache, A_wq, A_wo)
    h = _layernorm(x, axis=-1) * (1 + cb) + sb
    x = x + gb * _B_ref(h, B_w1, B_w2)
    return x
```

```python
import re
TRANS = ("v_exp_f32","v_log_f32","v_rcp_f32","v_rsq_f32","v_sqrt_f32","v_sin_f32","v_cos_f32")
def regs(tok):
    tok = tok.strip()
    m = re.fullmatch(r"-?\|?([vsa])\[(\d+):(\d+)\]\|?", tok)
    if m: return {(m.group(1), i) for i in range(int(m.group(2)), int(m.group(3)) + 1)}
    m = re.fullmatch(r"-?\|?([vsa])(\d+)\|?", tok)
    if m: return {(m.group(1), int(m.group(2)))}
    if tok == "vcc": return {("s", "vcc")}
    if tok == "exec": return {("s", "exec")}
    if tok == "m0": return {("s", "m0")}
    return set()
class I:
    def __init__(s, text):
        s.text = text
        t = text.split(";")[0].strip()
        s.label = t.endswith(":")
        s.op = "" if s.label or not t or t.startswith(".") else t.split()[0]
        rest = t[len(s.op):].strip() if s.op else ""
        ops = [x.strip() for x in rest.split(",")] if rest else []
        mods = ""
        if ops:
            parts = ops[-1].split()
        rest2 = re.sub(r"(quad_perm|op_sel|op_sel_hi|neg_lo|neg_hi):\[[^\]]*\]", lambda m: m.group(0).replace(",", "_"), rest)
        ops = [x.strip() for x in rest2.split(",")] if rest2 else []
        if ops:
            p = ops[-1].split()
            ops[-1] = p[0]; mods = " ".join(p[1:])
        s.ops = ops; s.mods = mods
        op = s.op
        s.mfma = op.startswith("v_mfma")
        s.valu = op.startswith("v_") and not s.mfma
        s.vmem = op.startswith("buffer_") or op.startswith("global_")
        s.ds = op.startswith("ds_")
        s.salu = op.startswith("s_")
        s.dpp = s.valu and ("_dpp" in op)
        s.perm = op.startswith("v_permlane")
        s.rdl = op.startswith("v_readfirstlane") or op.startswith("v_readlane")
        s.trans = any(op.startswith(x) for x in TRANS)
        s.ldsdma = s.vmem and "lds" in mods.split()
        s.dst = set(); s.src = set(); s.srcC = set(); s.wide = False
        R = [regs(x) for x in ops]
        if s.mfma:
            s.dst = R[0]; s.src = R[1] | R[2]; s.srcC = R[3]
        elif s.valu:
            if s.perm and "swap" in op:
                s.dst = R[0] | R[1]; s.src = R[0] | R[1]
            elif op == "v_nop": pass
            else:
                s.dst = set(R[0]);
                k = 1
                if "_co_" in op: s.dst |= R[1]; k = 2
                for r in R[k:]: s.src |= r
                if op.startswith(("v_fmac", "v_mac", "v_dot2c", "v_writelane")) or s.dpp: s.src |= R[0]
        elif s.vmem:
            if "load" in op and not s.ldsdma:
                s.dst = R[0]
                for r in R[1:]: s.src |= r
            else:
                for r in R: s.src |= r
                if "store" in op and ("x4" in op or "x3" in op): s.wide = True; s.wdata = R[0] if op.startswith("buffer") else R[1]
        elif s.ds:
            if "read" in op or "rtn" in op or "permute" in op or "swizzle" in op:
                s.dst = R[0]
                for r in R[1:]: s.src |= r
            else:
                for r in R: s.src |= r
        elif s.salu:
            if op.startswith(("s_cmp", "s_cbranch", "s_branch", "s_waitcnt", "s_barrier", "s_nop", "s_endpgm", "s_setprio", "s_bitcmp")):
                for r in R: s.src |= r
            else:
                if R: s.dst = R[0]
                for r in R[1:]: s.src |= r
        s.states = 1
        if op == "s_nop": s.states = int(ops[0]) + 1
def need(p, c):
    n = 0
    vd = {r for r in p.dst if r[0] in "va"}; sd = {r for r in p.dst if r[0] == "s"}
    if p.valu:
        if c.mfma and vd & (c.src | c.srcC): n = max(n, 2)
        if (c.dpp or c.perm) and vd & c.src: n = max(n, 2)
        if c.rdl and vd & c.src: n = max(n, 1)
        if p.trans and c.valu and vd & c.src: n = max(n, 1)
        if sd:
            if c.valu and sd & c.src: n = max(n, 4 if c.rdl else 2)
            if c.vmem and sd & c.src: n = max(n, 5)
    if p.mfma:
        if c.mfma:
            if vd & c.src: n = max(n, 8)
            if vd & c.srcC and vd != c.srcC: n = max(n, 6)
            if vd & c.dst and vd != c.srcC and not (vd & c.srcC): n = max(n, 0)
        elif c.valu and vd & (c.src | c.dst): n = max(n, 8)
        elif (c.vmem or c.ds) and vd & (c.src | c.dst): n = max(n, 8)
        if c.valu and p.srcC & c.dst: n = max(n, 3)
    if p.salu and ("s", "m0") in p.dst and c.ldsdma: n = max(n, 1)
    if p.wide and (c.valu or c.ds or c.vmem) and p.wdata & c.dst: n = max(n, 2)
    return n
class Asm:
    def __init__(s): s.l = []
    def __call__(s, text):
        for t in text.split("\n"):
            t = t.strip()
            if t: s.l.append(t)
    def fix(s):
        ins = [I(t) for t in s.l]
        out = []
        def hist(lst, k=12):
            h = []; d = 0
            for x in reversed(lst):
                if not x.op: continue
                h.append((x, d)); d += x.states
                if d >= k: break
                if x.op in ("s_branch", "s_endpgm"):
                    h.pop(); break
            return h
        for c in ins:
            if c.op:
                pad = 0
                for p, d in hist(out):
                    pad = max(pad, need(p, c) - d)
                if pad > 0: out.append(I(f"s_nop {pad-1}"))
            out.append(c)
        labels = {x.text.split(":")[0].strip(): i for i, x in enumerate(out) if x.label}
        res = []
        for i, c in enumerate(out):
            if c.op.startswith(("s_cbranch", "s_branch")) and c.ops[0] in labels:
                h = hist(res)
                j = labels[c.ops[0]]; d0 = 1; pad = 0
                while d0 < 10 and j < len(out):
                    t = out[j]; j += 1
                    if not t.op: continue
                    for p, d in h: pad = max(pad, need(p, t) - d - d0)
                    d0 += t.states
                    if t.op in ("s_branch", "s_endpgm"): break
                if pad > 0: res.append(I(f"s_nop {pad-1}"))
            res.append(c)
        return [x.text for x in res]
```

```python
import sys
sys.path.insert(0, "work")
from asmlib import Asm
KN = "adaLN_cond__gqa_block_cached__dense_activation_relu__decode_kernel"
HDR = open("adaLN_cond__gqa_block_cached__dense_activation_relu__decode.s.ref").read().split("; @launch")[0]

L_OX = 0; L_SB = L_OX + 16384; L_HB = L_SB + 3584; L_QB = L_HB + 3584; L_ML = L_QB + 1024; L_TAG = L_ML + 16
L_T1R = L_ML + 64; L_LNS = L_T1R + 1024; L_H2 = L_LNS + 64; L_X2 = L_H2 + 896; L_H1 = L_X2 + 1792; L_W1 = L_H1 + 256
L_W2 = L_W1 + 28672; L_S = L_W2 + 28672; L_END = L_S + 65536
W_EP = 0; W_H = 0x1000; W_MOD = 0x4000; W_Q = 0x10000; W_ST = 0x20000; W_O = 0x40000; W_AT = 0xC0000; W_Y = 0x100000
W_PROF = 0x200000
LOG2E = 1.4426950408889634
import struct
def f2u(x): return struct.unpack("<I", struct.pack("<f", x))[0]
SPIN = 40000

def gen(path, prof=False, nearly=5, knt="nt", **opt):
    A = Asm()
    lab = [0]
    def L(p="L"):
        lab[0] += 1; return f"{p}_{lab[0]}"
    nst = [0]
    def stamp(i):
        if prof: A(f"s_memrealtime s[{86+2*i}:{87+2*i}]")
    def prof_end(srd, vt):
        if not prof: return
        A("s_mov_b64 exec, -1")
        A("s_waitcnt lgkmcnt(0)")
        A("s_mul_i32 s84, s2, 12"); A("s_add_u32 s84, s84, s3"); A("s_lshl_b32 s84, s84, 6"); A(f"s_add_u32 s84, s84, {W_PROF}")
        A("s_getreg_b32 s85, hwreg(HW_REG_HW_ID)")
        for i in range(8): A(f"v_mov_b32 v{vt+i}, s{86+2*i}")
        A(f"v_mov_b32 v{vt+8}, s85"); A("s_getreg_b32 s85, hwreg(HW_REG_XCC_ID)"); A(f"v_mov_b32 v{vt+9}, s85")
        A(f"v_mov_b32 v{vt+10}, 0")
        A("s_mov_b64 exec, 1")
        A(f"buffer_store_dwordx4 v[{vt}:{vt+3}], v{vt+10}, {srd}, s84 offen")
        A(f"buffer_store_dwordx4 v[{vt+4}:{vt+7}], v{vt+10}, {srd}, s84 offen offset:16")
        A(f"buffer_store_dwordx2 v[{vt+8}:{vt+9}], v{vt+10}, {srd}, s84 offen offset:32")
        A("s_waitcnt vmcnt(0)")
    def srd(d, p, n):
        A(f"s_mov_b32 s{d}, s{p}"); A(f"s_mov_b32 s{d+1}, s{p+1}"); A(f"s_mov_b32 s{d+2}, {hex(n)}"); A(f"s_mov_b32 s{d+3}, 0x20000")
    DPPF = "row_mask:0xf bank_mask:0xf"

    A(f"{KN}:")
    A("s_cmp_ge_u32 s2, 0x100"); A("s_cbranch_scc1 L_END")
    if prof:
        for i in range(1, 8): A(f"s_mov_b64 s[{86+2*i}:{87+2*i}], 0")
    stamp(0)
    A("s_load_dwordx4 s[4:7], s[0:1], 8")
    A("v_lshrrev_b32 v1, 6, v0")
    A("v_readfirstlane_b32 s3, v1")
    A("v_and_b32 v0, 63, v0")
    A("s_cmp_lt_u32 s3, 4"); A("s_cbranch_scc1 L_HELP")

    vK, vV, vT0, vT1 = 1, 2, 0, 3
    KR = 40
    VE = 20
    QR = 4
    DR = 12
    assert nearly == 5
    def kreg(i): return KR + 4 * i
    def vreg(i): return VE + 4 * i if i < nearly else KR + 20 + 4 * (i - nearly)
    ER = KR; MR = KR + 16
    A("s_load_dwordx2 s[24:25], s[0:1], 96")
    A("s_sub_u32 s26, s3, 4")
    A("s_lshl_b32 s20, s2, 18"); A("s_lshl_b32 s21, s26, 13"); A("s_add_u32 s20, s20, s21")
    A("v_and_b32 v3, 15, v0"); A("v_lshrrev_b32 v4, 4, v0")
    A("v_lshrrev_b32 v5, 2, v3"); A("v_lshlrev_b32 v1, 11, v5"); A("v_lshl_add_u32 v1, v4, 6, v1")
    A("v_and_b32 v5, 3, v3"); A("v_lshl_add_u32 v1, v5, 4, v1")
    A("v_lshlrev_b32 v2, 11, v4"); A("v_lshl_add_u32 v2, v3, 4, v2")
    A("s_add_u32 s21, s20, 0x10000"); A("s_add_u32 s22, s20, 0x20000"); A("s_add_u32 s23, s20, 0x30000")
    A("s_mov_b32 s10, 0x4000000"); A("s_mov_b32 s11, 0x20000"); A("s_mov_b32 s14, 0x4000000"); A("s_mov_b32 s15, 0x20000")
    A("s_waitcnt lgkmcnt(0)")
    A("s_mov_b32 s8, s4"); A("s_mov_b32 s9, s5"); A("s_mov_b32 s12, s6"); A("s_mov_b32 s13, s7")
    def ld(i, r, va, sr):
        t, g, jj = i >> 3, (i >> 1) & 3, i & 1
        A(f"buffer_load_dwordx4 v[{r}:{r+3}], v{va}, {sr}, s{20+t} offen offset:{g*512+jj*256} {knt}")
    for i in range(32): ld(i, kreg(i), vK, "s[8:11]")
    for i in range(nearly): ld(i, vreg(i), vV, "s[12:15]")
    srd(16, 24, 0x10000000)
    A("v_lshrrev_b32 v5, 3, v3"); A("v_lshlrev_b32 v1, 9, v5"); A("v_lshl_add_u32 v1, v4, 6, v1")
    A("v_and_b32 v6, 3, v3"); A("v_lshl_add_u32 v1, v6, 4, v1")
    A(f"v_mov_b32 v6, {L_TAG}")
    A("v_lshlrev_b32 v0, 3, v5")
    A("s_lshl_b32 s28, s2, 7"); A("s_lshl_b32 s26, s26, 4"); A("s_add_u32 s28, s28, s26"); A(f"s_add_u32 s28, s28, {W_ST}")
    A(f"s_mov_b32 s27, {hex(f2u(LOG2E/16))}")
    stamp(1)
    A("s_barrier")
    A(f"ds_read_b32 v3, v6")
    A(f"ds_read_b128 v[{QR}:{QR+3}], v1 offset:{L_QB}")
    A(f"ds_read_b128 v[{QR+4}:{QR+7}], v1 offset:{L_QB+256}")
    A("s_waitcnt lgkmcnt(0)")
    A("v_readfirstlane_b32 s30, v3")
    stamp(2)
    def red(g):
        d = DR + 4 * (g & 1)
        A(f"v_mov_b32_dpp v3, v{d} quad_perm:[0,0,0,0] {DPPF}")
        for r in (1, 2, 3): A(f"v_add_f32_dpp v3, v{d+r}, v3 quad_perm:[{r},{r},{r},{r}] {DPPF}")
        A("v_cvt_pk_bf16_f32 v3, v3, v3")
        A(f"v_and_b32 v{ER+g}, 0xffff0000, v3")
    for g in range(16):
        d = DR + 4 * (g & 1)
        A(f"s_waitcnt vmcnt({32+nearly-2-2*g})")
        A(f"v_mfma_f32_16x16x32_bf16 v[{d}:{d+3}], v[{kreg(2*g)}:{kreg(2*g)+3}], v[{QR}:{QR+3}], 0")
        A(f"v_mfma_f32_16x16x32_bf16 v[{d}:{d+3}], v[{kreg(2*g+1)}:{kreg(2*g+1)+3}], v[{QR+4}:{QR+7}], v[{d}:{d+3}]")
        if g: red(g - 1)
    red(15)
    stamp(3)
    A(f"v_max3_f32 v4, v{ER}, v{ER+1}, v{ER+2}")
    for g in range(3, 15, 2): A(f"v_max3_f32 v4, v4, v{ER+g}, v{ER+g+1}")
    A(f"v_max_f32 v4, v4, v{ER+15}")
    def xrow(v, t, op):
        A(f"v_mov_b32 v{t}, v{v}"); A(f"v_permlane32_swap_b32 v{t}, v{v}"); A(f"{op} v{v}, v{v}, v{t}")
        A(f"v_mov_b32 v{t}, v{v}"); A(f"v_permlane16_swap_b32 v{t}, v{v}"); A(f"{op} v{v}, v{v}, v{t}")
    xrow(4, 3, "v_max_f32")
    for g in range(16): A(f"v_sub_f32 v{ER+g}, v{ER+g}, v4")
    for g in range(16): A(f"v_mul_f32 v{ER+g}, s27, v{ER+g}")
    for g in range(16): A(f"v_exp_f32 v{ER+g}, v{ER+g}")
    A(f"v_add_f32 v5, v{ER}, v{ER+1}"); A(f"v_add_f32 v6, v{ER+2}, v{ER+3}")
    for g in range(4, 16, 2):
        A(f"v_add_f32 v5, v5, v{ER+g}"); A(f"v_add_f32 v6, v6, v{ER+g+1}")
    A("v_add_f32 v5, v5, v6")
    xrow(5, 3, "v_add_f32")
    A("v_mov_b32 v3, 0x3ff")
    A("v_bfi_b32 v8, v3, s30, v4"); A("v_bfi_b32 v9, v3, s30, v5")
    A(f"v_mov_b32 v6, 0")
    A(f"v_mov_b32_dpp v10, v8 row_ror:8 {DPPF}"); A(f"v_mov_b32_dpp v11, v9 row_ror:8 {DPPF}")
    A("s_mov_b64 exec, 1")
    A("buffer_store_dwordx4 v[8:11], v6, s[16:19], s28 offen sc1")
    A("s_mov_b64 exec, -1")
    for i in range(nearly, 32): ld(i, vreg(i), vV, "s[12:15]")
    stamp(4)
    A("v_mbcnt_lo_u32_b32 v3, -1, 0"); A("v_mbcnt_hi_u32_b32 v3, -1, v3")
    A("v_and_b32 v6, 1, v3"); A("v_lshlrev_b32 v6, 4, v6"); A("v_mov_b32 v7, 0xffff"); A("v_lshlrev_b32 v6, v6, v7")
    A("v_bfe_u32 v7, v3, 1, 2")
    for r in range(4):
        A(f"v_cmp_eq_u32 vcc, {r}, v7"); A(f"v_cndmask_b32 v{MR+r}, 0, v6, vcc")
    A(f"v_lshlrev_b32 v1, 4, v3")
    A("s_sub_u32 s26, s3, 4"); A("s_lshl_b32 s26, s26, 11"); A(f"s_add_u32 s26, s26, {L_OX}"); A("v_add_u32 v1, s26, v1")
    lw, ld_ = L("SW"), L("SWD")
    A(f"s_mov_b32 s29, {SPIN*64}")
    A(f"{lw}:")
    A(f"ds_read_b64 v[6:7], v0 offset:{L_ML}")
    A("s_waitcnt lgkmcnt(0)")
    A("v_cmp_eq_u32 vcc, 0, v7"); A(f"s_cbranch_vccz {ld_}")
    A("s_sub_u32 s29, s29, 1"); A(f"s_cbranch_scc0 {lw}")
    A(f"{ld_}:")
    stamp(5)
    A("v_sub_f32 v4, v4, v6"); A("v_mul_f32 v4, s27, v4"); A("v_exp_f32 v4, v4"); A("v_mul_f32 v4, v4, v7")
    for g in range(16): A(f"v_mul_f32 v{ER+g}, v{ER+g}, v4")
    for g in range(16): A(f"v_cvt_pk_bf16_f32 v{ER+g}, v{ER+g}, v{ER+g}")
    def bb(g):
        d = DR + 4 * (g & 1)
        for r in range(4): A(f"v_and_b32 v{d+r}, v{ER+g}, v{MR+r}")
    bb(0)
    for g in range(16):
        d = DR + 4 * (g & 1)
        if g < 15: bb(g + 1)
        for h in range(2):
            i = 2 * g + h; a = QR + 4 * h
            A(f"s_waitcnt vmcnt({31-i})")
            A(f"v_mfma_f32_16x16x32_bf16 v[{a}:{a+3}], v[{vreg(i)}:{vreg(i)+3}], v[{d}:{d+3}], " + (f"v[{a}:{a+3}]" if g else "0"))
    stamp(6)
    A(f"ds_write_b128 v1, v[{QR}:{QR+3}]"); A(f"ds_write_b128 v1, v[{QR+4}:{QR+7}] offset:1024")
    A("s_waitcnt lgkmcnt(0)")
    A("s_barrier")
    prof_end("s[16:19]", 20)
    A("s_endpgm")

    X, WQ, WO, W1, W2, C, WM, OUT, WS = [f"s[{a}:{a+3}]" for a in range(44, 80, 4)]
    A("L_HELP:")
    A("s_setprio 3")
    A("s_load_dwordx2 s[42:43], s[0:1], 96")
    A("s_load_dwordx4 s[36:39], s[0:1], 64")
    A("s_load_dwordx4 s[28:31], s[0:1], 24")
    A("s_load_dwordx2 s[24:25], s[0:1], 0")
    A("s_load_dwordx4 s[32:35], s[0:1], 48")
    A("s_load_dwordx2 s[40:41], s[0:1], 80")
    A("s_lshr_b32 s8, s2, 3"); A("s_and_b32 s9, s2, 7"); A("s_lshr_b32 s10, s8, 3"); A("s_and_b32 s11, s8, 7")
    A("s_mul_i32 s12, s11, 7"); A("s_add_u32 s12, s12, s9")
    A("s_mov_b32 s14, 0xfffffc00"); A("s_movk_i32 s15, 0x3ff"); A("s_mov_b32 s81, 0xffff0000"); A("s_mov_b32 s82, 0x07060302")
    A("s_lshl_b32 s80, s3, 14"); A(f"s_add_u32 s80, s80, {L_S}")
    A("v_and_b32 v14, 15, v0"); A("v_lshrrev_b32 v15, 4, v0")
    A("v_lshrrev_b32 v11, 2, v14"); A("v_lshl_add_u32 v11, v15, 3, v11"); A("v_lshlrev_b32 v13, 5, v11")
    A("v_and_b32 v11, 3, v14"); A("v_lshl_add_u32 v13, v11, 3, v13")
    A("v_mov_b32 v12, 0")
    A("s_waitcnt lgkmcnt(0)")
    srd(76, 42, 0x10000000)
    A(f"buffer_load_dword v1, v12, {WS}, 0 offen sc1")
    srd(44, 24, 3584); srd(48, 28, 448*8192); srd(52, 30, 4096*896); srd(56, 32, 448*3584); srd(60, 34, 1792*896)
    srd(64, 36, 3584); srd(68, 38, 448*5376); srd(72, 40, 3584)

    def tile_dma(sr, pitch, scol, stage, va):
        for i in range(14):
            A(f"s_add_u32 m0, {stage}, {1024*i}")
            A(f"s_add_u32 s17, {scol}, {i*32*pitch}")
            A(f"buffer_load_dwordx4 v{va}, {sr}, s17 offen lds")
    def tile_addr(va, pitch):
        A(f"v_lshrrev_b32 v{va}, 1, v0"); A(f"v_mul_u32_u24 v{va}, {pitch}, v{va}")
        A("v_and_b32 v11, 1, v0"); A(f"v_lshl_add_u32 v{va}, v11, 4, v{va}")
    FA, FB = 48, 104
    def tile_afrag(stage):
        A(f"v_add_u32 v11, {stage}, v13")
        for kk in range(14):
            for u in range(2):
                A(f"ds_read_b64_tr_b16 v[{FA+4*kk+2*u}:{FA+4*kk+2*u+1}], v11 offset:{kk*1024+u*128}")
    def tile_bfrag(base):
        A("v_and_b32 v11, 3, v14"); A("v_mul_u32_u24 v11, 896, v11"); A("v_lshl_add_u32 v11, v15, 4, v11")
        for kk in range(14): A(f"ds_read_b128 v[{FB+4*kk}:{FB+4*kk+3}], v11 offset:{base+kk*64}")
    def tile_mfma(d):
        for kk in range(14):
            A(f"v_mfma_f32_16x16x32_bf16 v[{d}:{d+3}], v[{FA+4*kk}:{FA+4*kk+3}], v[{FB+4*kk}:{FB+4*kk+3}], " + (f"v[{d}:{d+3}]" if kk else "0"))
    def get_tag():
        A("v_readfirstlane_b32 s13, v1"); A("s_add_u32 s13, s13, 1"); A("s_and_b32 s17, s13, 0xffff"); A("v_mov_b32 v1, s17")
    def pub4(d, t=28):
        A(f"v_cvt_pk_bf16_f32 v{t}, v{d}, v{d+1}"); A(f"v_cvt_pk_bf16_f32 v{t+1}, v{d+2}, v{d+3}")
        A(f"v_lshl_or_b32 v{d}, v{t}, 16, v1"); A(f"v_and_or_b32 v{d+1}, v{t}, s81, v1")
        A(f"v_lshl_or_b32 v{d+2}, v{t+1}, 16, v1"); A(f"v_and_or_b32 v{d+3}, v{t+1}, s81, v1")
    def chk(acc, r, first):
        if first: A(f"v_bitop3_b32 v{acc}, v{r}, v{r+1}, v1 bitop3:0x7e")
        else:
            A(f"v_bitop3_b32 v{acc}, v{acc}, v{r}, v1 bitop3:0xf6"); A(f"v_bitop3_b32 v{acc}, v{acc}, v{r+1}, v1 bitop3:0xf6")
        A(f"v_bitop3_b32 v{acc}, v{acc}, v{r+2}, v1 bitop3:0xf6"); A(f"v_bitop3_b32 v{acc}, v{acc}, v{r+3}, v1 bitop3:0xf6")
    def poll(loads, rs, acc, mask, extra=None):
        lp, dn = L("PL"), L("PD")
        A(f"s_mov_b32 s16, {SPIN}")
        A(f"{lp}:")
        loads()
        A("s_waitcnt vmcnt(0)")
        for k, r in enumerate(rs): chk(acc, r, k == 0)
        if extra: extra()
        A(f"v_and_b32 v{acc}, {mask}, v{acc}"); A(f"v_cmp_ne_u32 vcc, 0, v{acc}"); A(f"s_cbranch_vccz {dn}")
        A("s_sub_u32 s16, s16, 1"); A(f"s_cbranch_scc0 {lp}")
        A(f"{dn}:")
    EX_N4 = ("0x000f000f", "0x000f000f")
    def setexec(lo, hi):
        A(f"s_mov_b32 exec_lo, {lo}"); A(f"s_mov_b32 exec_hi, {hi}")

    A("s_mov_b32 s18, 0")
    l7, lj = L("R7"), L("RJ")
    A("s_cmp_eq_u32 s9, 7"); A(f"s_cbranch_scc1 {l7}")
    A("s_lshl_b32 s19, s9, 2"); A("s_add_u32 s19, s19, s8")
    A("s_cmp_eq_u32 s3, 1"); A(f"s_cbranch_scc0 {lj}")
    A("s_cmp_lt_u32 s8, 8"); A("s_cselect_b32 s18, 1, 0")
    A("s_cmp_lt_u32 s8, 4"); A("s_cselect_b32 s18, 2, s18"); A("s_cselect_b32 s17, 0, 80"); A("s_add_u32 s19, s19, s17")
    A(f"s_branch {lj}")
    A(f"{l7}:")
    A("s_lshl_b32 s19, s8, 2"); A("s_add_u32 s19, s19, s3")
    A("s_cmp_lt_u32 s8, 21"); A("s_cselect_b32 s18, 1, 0")
    A(f"{lj}:")
    A("s_cmp_eq_u32 s3, 0"); A("s_cbranch_scc0 L_NOTP2")

    A("s_lshr_b32 s20, s8, 2"); A("s_lshl_b32 s20, s20, 5"); A("s_lshl_b32 s21, s9, 2"); A("s_add_u32 s20, s20, s21")
    A("s_and_b32 s21, s8, 3"); A("s_add_u32 s20, s20, s21")
    A("s_lshl_b32 s21, s20, 5")
    tile_addr(12, 8192)
    tile_dma(WQ, 8192, "s21", "s80", 12)
    A("v_lshlrev_b32 v12, 4, v0")
    A(f"s_mov_b32 s22, {W_H}"); A(f"s_mov_b32 s23, {W_H+4096}")
    A("s_waitcnt vmcnt(14)")
    get_tag()
    A(f"v_mov_b32 v11, {L_ML}"); A("v_mov_b32 v16, 0"); A("v_mov_b32 v17, 0")
    A("ds_write_b64 v11, v[16:17]"); A("ds_write_b64 v11, v[16:17] offset:8"); A(f"ds_write_b32 v11, v1 offset:16")
    A("s_waitcnt vmcnt(0)")
    stamp(1)
    tile_afrag("s80")
    def ldh():
        for i in range(7): A(f"buffer_load_dwordx4 v[{16+4*i}:{19+4*i}], v12, {WS}, s{22+(i>>2)} offen offset:{(i&3)*1024} sc1")
    poll(ldh, [16 + 4 * i for i in range(7)], 44, "0xffff")
    stamp(2)
    A("v_and_b32 v11, 3, v0"); A("v_mul_u32_u24 v11, 896, v11"); A("v_lshrrev_b32 v10, 2, v0"); A("v_lshl_add_u32 v11, v10, 3, v11")
    for i in range(7):
        r = 16 + 4 * i
        A(f"v_perm_b32 v{r}, v{r+1}, v{r}, s82"); A(f"v_perm_b32 v{r+1}, v{r+3}, v{r+2}, s82")
        A(f"ds_write_b64 v11, v[{r}:{r+1}] offset:{L_HB+i*128}")
    tile_bfrag(L_HB)
    A("s_waitcnt lgkmcnt(0)")
    tile_mfma(16)
    A("v_lshlrev_b32 v11, 14, v14"); A("v_lshl_add_u32 v11, v15, 4, v11")
    A("s_lshl_b32 s21, s20, 6"); A(f"s_add_u32 s21, s21, {W_Q}")
    pub4(16)
    setexec(*EX_N4)
    A(f"buffer_store_dwordx4 v[16:19], v11, {WS}, s21 offen sc1")
    A("s_mov_b64 exec, -1")
    A("s_lshl_b32 s22, s10, 14"); A("s_lshl_b32 s23, s11, 11"); A("s_add_u32 s22, s22, s23"); A(f"s_add_u32 s22, s22, {W_Q}")
    def ldq():
        for i in range(2): A(f"buffer_load_dwordx4 v[{20+4*i}:{23+4*i}], v12, {WS}, s22 offen offset:{i*1024} sc1")
    stamp(3)
    poll(ldq, [20, 24], 44, "0xffff")
    A("v_lshlrev_b32 v11, 3, v0")
    for i in range(2):
        r = 20 + 4 * i
        A(f"v_perm_b32 v{r}, v{r+1}, v{r}, s82"); A(f"v_perm_b32 v{r+1}, v{r+3}, v{r+2}, s82")
        A(f"ds_write_b64 v11, v[{r}:{r+1}] offset:{L_QB+i*512}")
    A("s_waitcnt lgkmcnt(0)")
    stamp(4)
    A("s_barrier")
    A("L_NOTP2:")

    A("s_cmp_eq_u32 s18, 0"); A("s_cbranch_scc1 L_NOJOB")
    A("v_lshlrev_b32 v12, 3, v0")
    for i in range(7): A(f"buffer_load_dwordx2 v[{16+2*i}:{17+2*i}], v12, {C}, 0 offen offset:{i*512}")
    A("v_and_b32 v11, 3, v0"); A("v_mul_u32_u24 v11, 896, v11"); A("v_lshrrev_b32 v10, 2, v0"); A("v_lshl_add_u32 v10, v10, 3, v11")
    for i in range(7): A(f"buffer_load_dwordx2 v[{34+2*i}:{35+2*i}], v10, {X}, 0 offen offset:{i*128}")
    A("v_lshl_add_u32 v10, v15, 3, v11"); A("s_lshl_b32 s20, s19, 5")
    A("s_cmp_eq_u32 s18, 2"); A("s_cselect_b32 s21, 0, 1792"); A("s_cselect_b32 s22, s20, 0"); A("s_add_u32 s21, s21, s20")
    A(f"buffer_load_dwordx2 v[8:9], v10, {X}, s22 offen")
    tile_addr(10, 5376)
    tile_dma(WM, 5376, "s21", "s80", 10)
    lh1 = L("H1")
    A("s_cmp_eq_u32 s18, 2"); A(f"s_cbranch_scc0 {lh1}")
    A("s_add_u32 s21, s21, 896"); A(f"s_mov_b32 s22, {L_OX}")
    tile_dma(WM, 5376, "s21", "s22", 10)
    A("s_waitcnt vmcnt(28)")
    A(f"{lh1}:")
    lh2 = L("H2")
    A("s_cmp_eq_u32 s18, 2"); A(f"s_cbranch_scc1 {lh2}")
    A("s_waitcnt vmcnt(14)")
    A(f"{lh2}:")
    lh3 = L("H3")
    A("s_cmp_eq_u32 s3, 0"); A(f"s_cbranch_scc1 {lh3}")
    get_tag()
    A(f"{lh3}:")
    A(f"s_mov_b32 s17, {hex(f2u(-LOG2E))}")
    for i in range(14):
        r = 16 + i
        A(f"v_lshlrev_b32 v30, 16, v{r}"); A(f"v_and_b32 v31, s81, v{r}")
        A("v_mul_f32 v32, s17, v30"); A("v_mul_f32 v33, s17, v31")
        A("v_exp_f32 v32, v32"); A("v_exp_f32 v33, v33")
        A("v_add_f32 v32, 1.0, v32"); A("v_add_f32 v33, 1.0, v33")
        A("v_rcp_f32 v32, v32"); A("v_rcp_f32 v33, v33")
        A("v_mul_f32 v30, v30, v32"); A("v_mul_f32 v31, v31, v33")
        A(f"v_cvt_pk_bf16_f32 v{r}, v30, v31")
        if i & 1: A(f"ds_write_b64 v12, v[{r-1}:{r}] offset:{L_SB+(i>>1)*512}")
    tile_bfrag(L_SB)
    lh4 = L("H4")
    A("s_cmp_eq_u32 s18, 2"); A(f"s_cbranch_scc1 {lh4}")
    A("s_waitcnt vmcnt(0)")
    tile_afrag("s80")
    A("s_waitcnt lgkmcnt(0)")
    tile_mfma(16)
    A("v_mul_u32_u24 v11, 7168, v14"); A("v_lshl_add_u32 v11, v15, 4, v11")
    A("s_lshl_b32 s21, s19, 6"); A(f"s_add_u32 s21, s21, {W_MOD}")
    pub4(16)
    setexec(*EX_N4)
    A(f"buffer_store_dwordx4 v[16:19], v11, {WS}, s21 offen sc1")
    A("s_mov_b64 exec, -1")
    A("s_branch L_JOBDONE")
    A(f"{lh4}:")
    def x4(v, t, op):
        A(f"{op}_dpp v{v}, v{v}, v{v} row_ror:4 {DPPF}"); A(f"{op}_dpp v{v}, v{v}, v{v} row_ror:8 {DPPF}")
        xrow(v, t, op)
    A("v_mov_b32 v2, 0"); A("v_mov_b32 v3, 0")
    for i in range(14):
        A(f"v_lshlrev_b32 v30, 16, v{34+i}"); A(f"v_and_b32 v31, s81, v{34+i}")
        A("v_add_f32 v2, v2, v30"); A("v_add_f32 v3, v3, v31")
    A("v_add_f32 v2, v2, v3")
    x4(2, 30, "v_add_f32")
    A(f"v_mul_f32 v2, {hex(f2u(1/448))}, v2")
    A("v_mov_b32 v3, 0"); A("v_mov_b32 v4, 0")
    for i in range(14):
        A(f"v_lshlrev_b32 v30, 16, v{34+i}"); A(f"v_and_b32 v31, s81, v{34+i}")
        A("v_sub_f32 v30, v30, v2"); A("v_sub_f32 v31, v31, v2")
        A("v_fmac_f32 v3, v30, v30"); A("v_fmac_f32 v4, v31, v31")
    A("v_add_f32 v3, v3, v4")
    x4(3, 30, "v_add_f32")
    A(f"v_mul_f32 v3, {hex(f2u(1/448))}, v3")
    def ln_stats(m, v):
        A(f"v_cvt_pk_bf16_f32 v{v}, v{m}, v{v}")
        A(f"v_lshlrev_b32 v{m}, 16, v{v}"); A(f"v_and_b32 v{v}, s81, v{v}")
        A(f"v_add_f32 v{v}, {hex(f2u(1e-5))}, v{v}")
        A(f"v_cvt_pk_bf16_f32 v{v}, v{v}, v{v}"); A(f"v_and_b32 v{v}, s81, v{v}")
        A(f"v_sqrt_f32 v{v}, v{v}")
        A(f"v_cvt_pk_bf16_f32 v{v}, v{v}, v{v}"); A(f"v_and_b32 v{v}, s81, v{v}")
        A(f"v_rcp_f32 v{v}, v{v}")
    ln_stats(2, 3)
    def rnd2(a, b, t):
        A(f"v_cvt_pk_bf16_f32 v{t}, v{a}, v{b}"); A(f"v_lshlrev_b32 v{a}, 16, v{t}"); A(f"v_and_b32 v{b}, s81, v{t}")
    A("v_lshlrev_b32 v24, 16, v8"); A("v_and_b32 v25, s81, v8"); A("v_lshlrev_b32 v26, 16, v9"); A("v_and_b32 v27, s81, v9")
    for r in range(4): A(f"v_sub_f32 v{24+r}, v{24+r}, v2")
    rnd2(24, 25, 30); rnd2(26, 27, 31)
    for r in range(4): A(f"v_mul_f32 v{24+r}, v{24+r}, v3")
    rnd2(24, 25, 30); rnd2(26, 27, 31)
    A("s_waitcnt vmcnt(14)")
    tile_afrag("s80")
    A("s_waitcnt lgkmcnt(0)")
    tile_mfma(16)
    A("s_waitcnt vmcnt(0)")
    tile_afrag("s22")
    A("s_waitcnt lgkmcnt(0)")
    tile_mfma(20)
    A("v_lshlrev_b32 v11, 4, v14"); A("v_lshl_add_u32 v11, v15, 6, v11")
    A("s_lshl_b32 s21, s19, 8"); A(f"s_add_u32 s21, s21, {W_H}")
    rnd2(16, 17, 30); rnd2(18, 19, 31); rnd2(20, 21, 30); rnd2(22, 23, 31)
    for r in range(4): A(f"v_add_f32 v{20+r}, 1.0, v{20+r}")
    rnd2(20, 21, 30); rnd2(22, 23, 31)
    for r in range(4): A(f"v_mul_f32 v{20+r}, v{24+r}, v{20+r}")
    rnd2(20, 21, 30); rnd2(22, 23, 31)
    for r in range(4): A(f"v_add_f32 v{16+r}, v{20+r}, v{16+r}")
    pub4(16)
    setexec(*EX_N4)
    A(f"buffer_store_dwordx4 v[16:19], v11, {WS}, s21 offen sc1")
    A("s_mov_b64 exec, -1")
    A("s_branch L_JOBDONE")
    A("L_NOJOB:")
    lh5 = L("H5")
    A("s_cmp_eq_u32 s3, 0"); A(f"s_cbranch_scc1 {lh5}")
    A("s_waitcnt vmcnt(0)")
    get_tag()
    A(f"{lh5}:")
    A("L_JOBDONE:")

    RWO, RW1, RW2 = 48, 112, 140
    A("s_cmp_eq_u32 s9, 7"); A("s_cbranch_scc1 L_NOTAILW")
    A("v_lshrrev_b32 v10, 3, v0"); A("v_mul_u32_u24 v10, 896, v10"); A("v_and_b32 v11, 7, v0"); A("v_lshl_add_u32 v10, v11, 4, v10")
    A("s_lshl_b32 s20, s11, 3"); A("s_add_u32 s20, s20, s3"); A(f"s_mul_i32 s20, s20, {64*896}"); A("s_lshl_b32 s21, s9, 7"); A("s_add_u32 s20, s20, s21")
    for i in range(16):
        A(f"s_add_u32 m0, s80, {1024*i}")
        A(f"s_add_u32 s17, s20, {((i>>3)*256+(i&7)*8)*896}")
        A(f"buffer_load_dwordx4 v10, {WO}, s17 offen lds")
    tile_addr(10, 3584)
    A("s_lshr_b32 s20, s3, 1"); A(f"s_mul_i32 s20, s20, {224*3584}"); A("s_lshl_b32 s21, s12, 6"); A("s_add_u32 s20, s20, s21")
    A("s_and_b32 s21, s3, 1"); A("s_lshl_b32 s21, s21, 5"); A("s_add_u32 s20, s20, s21")
    A("s_mul_i32 s22, s3, 7168"); A(f"s_add_u32 s23, s22, {L_W2}"); A(f"s_add_u32 s22, s22, {L_W1}")
    for i in range(7):
        A(f"s_add_u32 m0, s22, {1024*i}")
        A(f"s_add_u32 s17, s20, {i*32*3584}")
        A(f"buffer_load_dwordx4 v10, {W1}, s17 offen lds")
    A(f"s_mul_i32 s20, s12, {32*896}"); A("s_mul_i32 s21, s3, 224"); A("s_add_u32 s20, s20, s21")
    assert all((x * 4682) >> 16 == x // 14 for x in range(448))
    for i in range(7):
        A(f"v_add_u32 v10, {64*i}, v0"); A("v_mul_u32_u24 v11, 4682, v10"); A("v_lshrrev_b32 v11, 16, v11")
        A("v_mul_u32_u24 v11, 672, v11"); A(f"v_lshl_add_u32 v{16+i}, v10, 4, v11")
        A(f"s_add_u32 m0, s23, {1024*i}")
        A(f"buffer_load_dwordx4 v{16+i}, {W2}, s20 offen lds")
    A("L_NOTAILW:")
    lb = L("B1")
    A("s_cmp_eq_u32 s3, 0"); A(f"s_cbranch_scc1 {lb}")
    stamp(4)
    A("s_barrier")
    A(f"{lb}:")
    A("s_cmp_eq_u32 s9, 7"); A("s_cbranch_scc1 L_NOTAILR")
    A("s_waitcnt vmcnt(0)")
    A("v_lshrrev_b32 v10, 2, v14"); A("v_lshlrev_b32 v11, 10, v10"); A("v_lshl_add_u32 v11, v15, 8, v11")
    A("v_and_b32 v12, 3, v14"); A("v_lshl_add_u32 v11, v12, 3, v11"); A("v_add_u32 v11, s80, v11")
    for t in range(4):
        for kq in range(4):
            for u in range(2):
                r = RWO + 16 * t + 4 * kq + 2 * u
                A(f"ds_read_b64_tr_b16 v[{r}:{r+1}], v11 offset:{(kq&1)*8192+(kq>>1)*4096+u*128+32*t}")
    A("v_add_u32 v11, s22, v13")
    for i in range(7):
        for u in range(2):
            r = RW1 + 4 * i + 2 * u
            A(f"ds_read_b64_tr_b16 v[{r}:{r+1}], v11 offset:{i*1024+u*128}")
    A("v_lshl_add_u32 v10, v15, 2, v10"); A("v_mul_u32_u24 v10, 224, v10"); A("v_lshl_add_u32 v11, v12, 3, v10"); A("v_add_u32 v11, s23, v11")
    for t in range(7):
        for u in range(2):
            r = RW2 + 4 * t + 2 * u
            A(f"ds_read_b64_tr_b16 v[{r}:{r+1}], v11 offset:{u*3584+32*t}")
    A("L_NOTAILR:")

    A("s_cmp_eq_u32 s3, 2"); A("s_cbranch_scc0 L_NOSTAT")
    A("v_lshlrev_b32 v12, 4, v0"); A("s_lshl_b32 s20, s8, 10"); A(f"s_add_u32 s20, s20, {W_ST}")
    poll(lambda: A(f"buffer_load_dwordx4 v[16:19], v12, {WS}, s20 offen sc1"), [16], 44, "s15")
    for r in range(4): A(f"v_and_b32 v{16+r}, s14, v{16+r}")
    def allred(vs, op):
        for pat in ("quad_perm:[1,0,3,2]", "quad_perm:[2,3,0,1]", "row_half_mirror", "row_mirror"):
            for v in vs: A(f"{op}_dpp v{v}, v{v}, v{v} {pat} {DPPF}")
        for v in vs: xrow(v, 30, op)
    A("v_mov_b32 v20, v16"); A("v_mov_b32 v22, v18")
    allred([20, 22], "v_max_f32")
    A(f"s_mov_b32 s17, {hex(f2u(LOG2E/16))}")
    A("v_sub_f32 v16, v16, v20"); A("v_sub_f32 v18, v18, v22"); A("v_mul_f32 v16, s17, v16"); A("v_mul_f32 v18, s17, v18")
    A("v_exp_f32 v16, v16"); A("v_exp_f32 v18, v18"); A("v_mul_f32 v21, v16, v17"); A("v_mul_f32 v23, v18, v19")
    allred([21, 23], "v_add_f32")
    A("v_rcp_f32 v21, v21"); A("v_rcp_f32 v23, v23"); A(f"v_mov_b32 v11, {L_ML}")
    A("s_mov_b64 exec, 1"); A("ds_write_b128 v11, v[20:23]"); A("s_mov_b64 exec, -1")
    stamp(5)
    A("L_NOSTAT:")

    A("s_cmp_eq_u32 s9, 7"); A("s_cbranch_scc1 L_NOMODG")
    for r in range(2, 10): A(f"v_mov_b32 v{r}, 0")
    A("v_and_b32 v11, 31, v0"); A("s_mul_i32 s20, s3, 28"); A("v_add_u32 v11, s20, v11")
    A("v_lshlrev_b32 v12, 4, v11")
    A("v_lshrrev_b32 v10, 5, v0"); A("v_lshlrev_b32 v10, 2, v10"); A("v_lshl_add_u32 v10, v11, 3, v10")
    A("s_mul_i32 s20, s10, 7168"); A(f"s_add_u32 s20, s20, {W_MOD}"); A("s_mul_i32 s21, s10, 896")
    setexec("0x0fffffff", "0x0fffffff")
    A(f"buffer_load_dword v28, v10, {X}, s21 offen")
    def ldm():
        for c in range(3): A(f"buffer_load_dwordx4 v[{16+4*c}:{19+4*c}], v12, {WS}, s20 offen offset:{c*1792} sc1")
    poll(ldm, [16, 20, 24], 44, "0xffff")
    A("s_mov_b32 s84, 0"); A("s_mov_b32 s85, -1")
    for c, d in ((0, 2), (1, 6), (2, 4)):
        for e in range(2):
            A(f"v_cndmask_b32 v{d+e}, v{16+4*c+e}, v{18+4*c+e}, s[84:85]"); A(f"v_and_b32 v{d+e}, s81, v{d+e}")
    A("v_add_f32 v4, 1.0, v4"); A("v_add_f32 v5, 1.0, v5")
    rnd2(4, 5, 30)
    A("v_lshlrev_b32 v8, 16, v28"); A("v_and_b32 v9, s81, v28")
    A("s_mov_b64 exec, -1")
    A("s_cmp_lt_u32 s12, 32"); A("s_cselect_b32 s18, 1, 0"); A("s_cmp_eq_u32 s3, 3"); A("s_cselect_b32 s18, s18, 0")
    A("s_cmp_eq_u32 s18, 0"); A("s_cbranch_scc1 L_NOMODG")
    A("s_lshr_b32 s21, s12, 3"); A("s_mul_i32 s21, s21, 112"); A("s_bfe_u32 s22, s12, 0x10002"); A("s_lshl_b32 s23, s22, 6"); A("s_add_u32 s21, s21, s23")
    A("s_and_b32 s23, s12, 3"); A("s_lshl_b32 s23, s23, 2"); A("s_add_u32 s19, s21, s23")
    A("s_cmp_eq_u32 s22, 0"); A("s_cselect_b32 s83, -1, 0xffff")
    A("v_lshlrev_b32 v12, 4, v15"); A("v_add_u32 v12, s19, v12"); A("v_lshlrev_b32 v12, 2, v12")
    A("s_add_u32 s20, s20, 5376")
    A("s_mov_b32 exec_hi, s83")
    poll(lambda: A(f"buffer_load_dwordx4 v[16:19], v12, {WS}, s20 offen sc1"), [16], 44, "0xffff")
    A("v_and_b32 v11, 3, v0")
    for e in range(1, 4):
        A(f"v_cmp_eq_u32 vcc, {e}, v11"); A(f"v_cndmask_b32 v16, v16, v{16+e}, vcc")
    A("v_and_b32 v10, s81, v16")
    A("s_mov_b64 exec, -1")
    A("L_NOMODG:")

    A("v_lshlrev_b32 v11, 4, v0"); A("s_lshl_b32 s20, s3, 9"); A("v_add_u32 v11, s20, v11")
    A("s_lshl_b32 s20, s2, 11"); A(f"s_add_u32 s20, s20, {W_O}")
    A("v_and_b32 v12, 3, v14"); A("v_lshlrev_b32 v12, 11, v12"); A("v_lshrrev_b32 v13, 2, v14"); A("v_lshl_add_u32 v12, v13, 7, v12")
    A("v_lshl_add_u32 v12, v15, 5, v12"); A("s_lshl_b32 s21, s3, 9"); A("v_add_u32 v12, s21, v12")
    A("s_lshl_b32 s22, s8, 14"); A(f"s_add_u32 s22, s22, {W_O}"); A("s_add_u32 s23, s22, 8192")
    A("s_waitcnt lgkmcnt(0)")
    setexec("-1", "0")
    stamp(6)
    A("s_barrier")
    for w in range(8): A(f"ds_read_b128 v[{16+4*w}:{19+4*w}], v11 offset:{L_OX+w*2048}")
    def pk(d, a, b):
        A(f"v_pk_add_f32 v[{d}:{d+1}], v[{a}:{a+1}], v[{b}:{b+1}]"); A(f"v_pk_add_f32 v[{d+2}:{d+3}], v[{a+2}:{a+3}], v[{b+2}:{b+3}]")
    A("s_waitcnt lgkmcnt(6)"); pk(16, 16, 20)
    A("s_waitcnt lgkmcnt(4)"); pk(24, 24, 28)
    A("s_waitcnt lgkmcnt(2)"); pk(32, 32, 36); pk(16, 16, 24)
    A("s_waitcnt lgkmcnt(0)"); pk(40, 40, 44); pk(32, 32, 40); pk(16, 16, 32)
    for r in range(4): A(f"v_bfi_b32 v{16+r}, s15, v1, v{16+r}")
    A(f"buffer_store_dwordx4 v[16:19], v11, {WS}, s20 offen sc1")
    A("s_mov_b64 exec, -1")
    A("s_cmp_eq_u32 s9, 7"); A("s_cbranch_scc1 L_J7END")

    def ldo():
        for a in range(2):
            for u in range(2): A(f"buffer_load_dwordx4 v[{20+8*a+4*u}:{23+8*a+4*u}], v12, {WS}, s{22+a} offen offset:{16*u} sc1")
    poll(ldo, [20, 24, 28, 32], 44, "s15")
    for r in range(16): A(f"v_and_b32 v{20+r}, s14, v{20+r}")
    pk(20, 20, 28); pk(24, 24, 32)
    for pat in ("quad_perm:[1,0,3,2]", "quad_perm:[2,3,0,1]"):
        for r in range(8): A(f"v_add_f32_dpp v{20+r}, v{20+r}, v{20+r} {pat} {DPPF}")
    for r in range(4): A(f"v_cvt_pk_bf16_f32 v{28+r}, v{20+2*r}, v{21+2*r}")
    for i in range(1, 4):
        for r in range(4): A(f"v_mov_b32_dpp v{28+4*i+r}, v{28+r} row_ror:{16-4*i} {DPPF}")
    DT = [16, 20, 24, 44]
    for kq in range(4):
        for t in range(4):
            d = DT[t]; a = RWO + 16 * t + 4 * kq
            A(f"v_mfma_f32_16x16x32_bf16 v[{d}:{d+3}], v[{a}:{a+3}], v[{28+4*kq}:{31+4*kq}], " + (f"v[{d}:{d+3}]" if kq else "0"))
    A("v_lshlrev_b32 v11, 4, v15"); A("s_lshl_b32 s20, s3, 8"); A("v_add_u32 v11, s20, v11")
    A("v_and_b32 v12, 31, v0"); A("s_mul_i32 s20, s3, 28"); A("v_add_u32 v13, s20, v12")
    A("v_lshrrev_b32 v12, 5, v0"); A("v_mul_u32_u24 v12, 7168, v12"); A("v_lshl_add_u32 v12, v13, 4, v12")
    A(f"s_mul_i32 s22, s10, {8*1792}"); A(f"s_add_u32 s22, s22, {W_AT}"); A("s_add_u32 s23, s22, 3584")
    setexec("0x00010001", "0x00010001")
    for t in range(4): A(f"ds_write_b128 v11, v[{DT[t]}:{DT[t]+3}] offset:{L_T1R+64*t}")
    A("s_mov_b64 exec, -1")
    A("s_waitcnt lgkmcnt(0)")
    A("s_barrier")
    A("s_cmp_eq_u32 s3, 0"); A("s_cbranch_scc0 L_T2")
    A("s_mov_b64 exec, 0xffff")
    A("v_lshlrev_b32 v11, 4, v0")
    for w in range(4): A(f"ds_read_b128 v[{16+4*w}:{19+4*w}], v11 offset:{L_T1R+256*w}")
    A("s_lshl_b32 s20, s9, 8"); A("s_mul_i32 s21, s8, 1792"); A("s_add_u32 s20, s20, s21"); A(f"s_add_u32 s20, s20, {W_AT}")
    A("s_waitcnt lgkmcnt(2)"); pk(16, 16, 20)
    A("s_waitcnt lgkmcnt(0)"); pk(24, 24, 28); pk(16, 16, 24)
    for r in range(4): A(f"v_bfi_b32 v{16+r}, s15, v1, v{16+r}")
    A(f"buffer_store_dwordx4 v[16:19], v11, {WS}, s20 offen sc1")
    A("s_mov_b64 exec, -1")

    A("L_T2:")
    G2 = 48
    for r in range(16): A(f"v_mov_b32 v{G2+r}, 0")
    setexec("0x0fffffff", "0x0fffffff")
    def lda():
        for i in range(4): A(f"buffer_load_dwordx4 v[{G2+4*i}:{G2+3+4*i}], v12, {WS}, s{22+(i>>1)} offen offset:{(i&1)*1792} sc1")
    poll(lda, [G2 + 4 * i for i in range(4)], 44, "s15")
    A("s_mov_b64 exec, -1")
    for r in range(16): A(f"v_and_b32 v{G2+r}, s14, v{G2+r}")
    pk(G2, G2, G2 + 4); pk(G2 + 8, G2 + 8, G2 + 12); pk(G2, G2, G2 + 8)
    A(f"v_permlane32_swap_b32 v{G2}, v{G2+2}"); A(f"v_permlane32_swap_b32 v{G2+1}, v{G2+3}")
    A(f"v_pk_add_f32 v[16:17], v[{G2}:{G2+1}], v[{G2+2}:{G2+3}]")
    rnd2(16, 17, 18)
    A("v_pk_mul_f32 v[16:17], v[16:17], v[2:3]")
    rnd2(16, 17, 18)
    A("v_pk_add_f32 v[16:17], v[16:17], v[8:9]")
    rnd2(16, 17, 18)
    A("v_add_f32 v18, v16, v17"); A("v_mul_f32 v19, v16, v16"); A("v_fmac_f32 v19, v17, v17")
    A("v_lshrrev_b32 v11, 5, v0"); A("v_lshlrev_b32 v32, 2, v11"); A("s_lshl_b32 s20, s3, 3"); A("v_add_u32 v32, s20, v32")
    A("v_permlane32_swap_b32 v18, v19"); A("v_add_f32 v18, v18, v19")
    A("v_mov_b32 v19, v18"); A("v_permlane16_swap_b32 v19, v18"); A("v_add_f32 v18, v18, v19")
    for pat in ("quad_perm:[1,0,3,2]", "quad_perm:[2,3,0,1]", "row_half_mirror", "row_mirror"):
        A(f"v_add_f32_dpp v18, v18, v18 {pat} {DPPF}")
    setexec("1", "1")
    A(f"ds_write_b32 v32, v18 offset:{L_LNS}")
    setexec("0x0fffffff", "0x0fffffff")
    A("v_lshlrev_b32 v34, 1, v11"); A("v_lshl_add_u32 v34, v13, 2, v34")
    A("v_lshlrev_b32 v33, 2, v34")
    A(f"ds_write_b64 v33, v[16:17] offset:{L_X2}")
    A("v_lshlrev_b32 v34, 1, v34")
    A("v_mov_b32 v35, 0")
    A("s_waitcnt lgkmcnt(0)")
    A("s_barrier")
    A(f"ds_read_b128 v[24:27], v35 offset:{L_LNS}"); A(f"ds_read_b128 v[28:31], v35 offset:{L_LNS+16}")
    A("s_waitcnt lgkmcnt(0)")
    pk(24, 24, 28)
    A("v_pk_add_f32 v[24:25], v[24:25], v[26:27]")
    A(f"v_mul_f32 v24, {hex(f2u(1/448))}, v24"); A(f"v_mul_f32 v25, {hex(f2u(1/448))}, v25")
    A("v_fma_f32 v25, -v24, v24, v25"); A("v_max_f32 v25, 0, v25")
    ln_stats(24, 25)
    A("v_sub_f32 v16, v16, v24"); A("v_sub_f32 v17, v17, v24")
    rnd2(16, 17, 18)
    A("v_mul_f32 v16, v16, v25"); A("v_mul_f32 v17, v17, v25")
    rnd2(16, 17, 18)
    A("v_pk_mul_f32 v[16:17], v[16:17], v[4:5]")
    rnd2(16, 17, 18)
    A("v_pk_add_f32 v[16:17], v[16:17], v[6:7]")
    A("v_cvt_pk_bf16_f32 v18, v16, v17")
    A(f"ds_write_b32 v34, v18 offset:{L_H2}")
    A("s_mov_b64 exec, -1")
    A("s_lshr_b32 s20, s3, 1"); A("s_mul_i32 s20, s20, 448"); A("v_lshlrev_b32 v11, 4, v15"); A("v_add_u32 v36, s20, v11")
    A("s_lshl_b32 s20, s3, 6"); A("v_add_u32 v37, s20, v11")
    A("s_waitcnt lgkmcnt(0)")
    A("s_barrier")
    for i in range(7): A(f"ds_read_b128 v[{G2+4*i}:{G2+3+4*i}], v36 offset:{L_H2+64*i}")
    for i in range(7):
        d = 16 + 4 * (i & 1)
        A(f"s_waitcnt lgkmcnt({6-i})")
        A(f"v_mfma_f32_16x16x32_bf16 v[{d}:{d+3}], v[{RW1+4*i}:{RW1+4*i+3}], v[{G2+4*i}:{G2+4*i+3}], " + (f"v[{d}:{d+3}]" if i > 1 else "0"))
    A("v_lshlrev_b32 v12, 4, v0"); A("s_lshl_b32 s20, s3, 9"); A("v_add_u32 v12, s20, v12")
    A("s_mul_i32 s20, s10, 56"); A("s_add_u32 s20, s20, s12"); A("s_lshl_b32 s20, s20, 11"); A(f"s_add_u32 s20, s20, {W_Y}")
    A("s_mov_b32 s84, 0xffff0000"); A("s_mov_b32 s85, 0")
    pk(16, 16, 20)
    setexec("0x00010001", "0x00010001")
    A(f"ds_write_b128 v37, v[16:19] offset:{L_H1}")
    A("s_mov_b64 exec, -1")
    A("s_waitcnt lgkmcnt(0)")
    A("s_barrier")
    for k in range(4): A(f"ds_read_b128 v[{16+4*k}:{19+4*k}], v11 offset:{L_H1+64*k}")
    A("s_waitcnt lgkmcnt(1)"); pk(16, 16, 24)
    A("s_waitcnt lgkmcnt(0)"); pk(20, 20, 28)
    for r in range(4): A(f"v_cvt_pk_bf16_f32 v{24+r}, v{16+2*r}, v{17+2*r}")
    for r in range(4): A(f"v_pk_max_i16 v{24+r}, v{24+r}, 0")
    for t in range(7):
        d = G2 + 4 * t
        A(f"v_mfma_f32_16x16x32_bf16 v[{d}:{d+3}], v[24:27], v[{RW2+4*t}:{RW2+4*t+3}], 0")
    for i in range(3): A(f"v_cndmask_b32 v{16+i}, v{G2+4*i}, v{G2+16+4*i}, s[84:85]")
    for i in range(3): A(f"v_bfi_b32 v{16+i}, s15, v1, v{16+i}")
    A(f"v_bfi_b32 v19, s15, v1, v{G2+12}")
    setexec("-1", "0")
    A(f"buffer_store_dwordx4 v[16:19], v12, {WS}, s20 offen sc1")
    A("s_mov_b64 exec, -1")
    A("s_cmp_eq_u32 s18, 0"); A("s_cbranch_scc1 L_HEND")

    A("v_and_b32 v11, 3, v0"); A("v_lshrrev_b32 v12, 2, v0"); A("v_lshlrev_b32 v12, 11, v12"); A("v_lshl_add_u32 v12, v11, 4, v12")
    A(f"s_mul_i32 s20, s10, {56*2048}"); A("s_lshl_b32 s21, s12, 6"); A("s_add_u32 s20, s20, s21"); A(f"s_add_u32 s20, s20, {W_Y}")
    A("s_add_u32 s21, s20, 0x8000"); A("s_add_u32 s22, s20, 0x10000"); A("s_add_u32 s23, s20, 0x18000")
    for r in range(4): A(f"v_mov_b32 v{32+r}, 0")
    def ldy():
        for i in range(3): A(f"buffer_load_dwordx4 v[{20+4*i}:{23+4*i}], v12, {WS}, s{20+i} offen sc1")
        setexec("-1", "0")
        A(f"buffer_load_dwordx4 v[32:35], v12, {WS}, s23 offen sc1")
        A("s_mov_b64 exec, -1")
    def exy():
        setexec("-1", "0"); chk(44, 32, False); A("s_mov_b64 exec, -1")
    A("v_lshl_add_u32 v13, v15, 4, v11"); A("v_add_u32 v13, s19, v13"); A("v_lshlrev_b32 v16, 2, v13")
    A(f"ds_read_b32 v17, v16 offset:{L_X2}")
    A("v_lshlrev_b32 v13, 1, v13"); A("s_mul_i32 s19, s10, 896")
    poll(ldy, [20, 24, 28], 44, "s15", exy)
    for r in range(16): A(f"v_and_b32 v{20+r}, s14, v{20+r}")
    pk(20, 20, 24); pk(28, 28, 32); pk(20, 20, 28)
    A("v_permlane32_swap_b32 v20, v22"); A("v_permlane32_swap_b32 v21, v23")
    A("v_pk_add_f32 v[20:21], v[20:21], v[22:23]")
    A("v_permlane16_swap_b32 v20, v21"); A("v_add_f32 v20, v20, v21")
    A(f"v_add_f32_dpp v20, v20, v20 row_ror:4 {DPPF}"); A(f"v_add_f32_dpp v20, v20, v20 row_ror:8 {DPPF}")
    A("v_cvt_pk_bf16_f32 v20, v20, v20"); A("v_and_b32 v20, s81, v20")
    A("v_mul_f32 v20, v20, v10")
    A("v_cvt_pk_bf16_f32 v20, v20, v20"); A("v_and_b32 v20, s81, v20")
    A("s_waitcnt lgkmcnt(0)")
    A("v_add_f32 v20, v20, v17")
    A("v_cvt_pk_bf16_f32 v20, v20, v20")
    A("s_and_b32 s83, s83, 0x000f000f"); A("s_mov_b32 exec_lo, 0x000f000f"); A("s_mov_b32 exec_hi, s83")
    A(f"buffer_store_short v20, v13, {OUT}, s19 offen")
    A("s_branch L_HEND")

    A("L_J7END:")
    A("s_cmp_eq_u32 s2, 7"); A("s_cbranch_scc0 L_HEND")
    A("s_cmp_eq_u32 s3, 0"); A("s_cbranch_scc0 L_HEND")
    A(f"s_mov_b32 s20, {56*2048}"); A("v_mul_lo_u32 v12, v0, s20"); A(f"s_mov_b32 s20, {W_Y}")
    A("s_mov_b64 exec, 15")
    poll(lambda: A(f"buffer_load_dwordx4 v[20:23], v12, {WS}, s20 offen sc1"), [20], 44, "s15")
    A("s_mov_b64 exec, 1")
    A("v_mov_b32 v20, s13")
    A(f"buffer_store_dword v20, v12, {WS}, 0 offen sc1")
    A("L_HEND:")
    stamp(7)
    prof_end(WS, 20)
    A("L_END:")
    A("s_endpgm")

    body = A.fix()
    o = [HDR.rstrip("\n"), f"; @launch grid=(256,1,1) block=(768,1,1) lds={L_END}", '.amdgcn_target "amdgcn-amd-amdhsa--gfx950"', ".text", f".globl {KN}", ".p2align 8", f".type {KN},@function"]
    o += body
    o += ['.section .rodata,"a"', ".p2align 6", f".amdhsa_kernel {KN}", "  .amdhsa_next_free_vgpr 168", "  .amdhsa_next_free_sgpr 102", "  .amdhsa_accum_offset 168",
          "  .amdhsa_group_segment_fixed_size 0", "  .amdhsa_kernarg_size 104", "  .amdhsa_user_sgpr_count 2", "  .amdhsa_user_sgpr_kernarg_segment_ptr 1",
          "  .amdhsa_system_sgpr_workgroup_id_x 1", ".end_amdhsa_kernel"]
    open(path, "w").write("\n".join(o) + "\n")

if __name__ == "__main__":
    gen("k0.s")
    gen("k0p.s", prof=True)
```
